```python
import torch

def _softmax(x, axis=-1):
    return torch.softmax(x, dim=axis)
def _gelu(x):
    return torch.nn.functional.gelu(x, approximate="tanh")
def _silu(x):
    return torch.nn.functional.silu(x)
def _sigmoid(x):
    return torch.sigmoid(x)
def _layernorm(x, axis=-1, eps=1e-5):
    m = x.mean(dim=axis, keepdim=True)
    v = x.var(dim=axis, keepdim=True, unbiased=False)
    return (x - m) / torch.sqrt(v + eps)
def _scatter_add(tgt, idx, src, axis=0):
    return tgt.clone().index_add_(axis, idx, src)
def _segment_sum(src, seg, n):
    out = torch.zeros((n,) + src.shape[1:], dtype=src.dtype)
    return out.index_add_(0, seg, src)
def _pad(x, pw):
    flat = tuple(v for pair in reversed(pw) for v in pair)
    return torch.nn.functional.pad(x, flat)

kernel_name = 'standalone__weight_only_int_omniquant__prompt'

def setup_inputs():

    _w = (lambda a: (lambda t: t.to(torch.bfloat16) if t.is_floating_point() else t)(torch.as_tensor(a)))
    B, S, D, F = 1, 2048, 1024, 3584
    bits = 8
    G = 32 if 32 > 0 else D
    D = (D // G) * G
    ng = D // G
    qmax = (1 << bits) - 1
    qw = torch.randint(0, qmax + 1, (D, F)).to(torch.int32)
    scales = (torch.abs((lambda *s: torch.randn(*s, dtype=torch.bfloat16) * 0.05)(ng, F)) * 0.05 + 0.01).to(float)
    zeros = torch.randint(0, qmax + 1, (ng, F)).to(float)
    act_scale = (torch.abs((lambda *s: torch.randn(*s, dtype=torch.bfloat16) * 0.05)(D)) * 0.5 + 0.5).to(float)
    return {
        "x": _w((lambda *s: torch.randn(*s, dtype=torch.bfloat16) * 0.05)(B, S, D)),
        "qw": _w(qw),
        "scales": _w(scales),
        "zeros": _w(zeros),
        "act_scale": _w(act_scale),
    }

def reference(x, qw, scales, zeros, act_scale):
    B, S, D = x.shape
    ng, F = scales.shape
    G = D // ng
    s = (lambda x, n, axis: torch.repeat_interleave(x, n, dim=axis))(scales, G, axis=0)
    z = (lambda x, n, axis: torch.repeat_interleave(x, n, dim=axis))(zeros, G, axis=0)
    w = ((lambda x, dt: x.to(dt))(qw, x.dtype) - z) * s
    xs = x * (lambda x, dt: x.to(dt))(act_scale, x.dtype)
    return torch.einsum("bsd,df->bsf", xs, w)
```

```python
import sys

NAME = "standalone__weight_only_int_omniquant__prompt"

HEADER = """; Kernarg layout for this problem (64 bytes, ptrs only, base s[0:1]):
"""

XSIZE = 2048 * 1024 * 2
QSIZE = 1024 * 3584 * 4
SSIZE = 32 * 3584 * 2
ASIZE = 1024 * 2
OSIZE = 2048 * 3584 * 2
QROW = 14336
OROW = 7168

class Opt:
    rot = True
    pk = False
    no_mfma = False
    no_store = False
    no_deq = False
    store_flags = ""
    q_flags = ""
    x_flags = ""


def gen(opt):
    L = []
    e = L.append
    NWG = 224
    e(HEADER.rstrip())
    e(f"; @launch grid=({NWG},1,1) block=(512,1,1) lds=163840")
    e('.amdgcn_target "amdgcn-amd-amdhsa--gfx950"')
    e(".text")
    e(f".globl {NAME}_kernel")
    e(".p2align 8")
    e(f".type {NAME}_kernel,@function")
    e(f"{NAME}_kernel:")
    e(f"  s_cmp_ge_u32 s2, {NWG}")
    e("  s_cbranch_scc1 L_end")
    e("  s_load_dwordx16 s[32:47], s[0:1], 0")
    e("  v_lshrrev_b32 v1, 6, v0")
    e("  v_and_b32 v0, 63, v0")
    e("  v_readfirstlane_b32 s3, v1")
    e("  s_and_b32 s4, s2, 7")
    e("  s_lshr_b32 s5, s2, 3")
    e("  s_and_b32 s6, s4, 1")
    e("  s_lshl_b32 s6, s6, 2")
    e("  s_and_b32 s7, s5, 3")
    e("  s_add_u32 s6, s6, s7")
    e("  s_lshl_b32 s48, s6, 8")
    e("  s_lshr_b32 s6, s4, 1")
    e("  s_mul_i32 s6, s6, 7")
    e("  s_lshr_b32 s7, s5, 2")
    e("  s_add_u32 s6, s6, s7")
    e("  s_lshl_b32 s49, s6, 7")
    if opt.rot:
        e("  s_lshl_b32 s50, s4, 1")
    else:
        e("  s_mov_b32 s50, 0")
    e("  s_waitcnt lgkmcnt(0)")
    def srd(base, ptr, size):
        e(f"  s_mov_b32 s{base}, s{ptr}")
        e(f"  s_and_b32 s{base+1}, s{ptr+1}, 0xffff")
        e(f"  s_mov_b32 s{base+2}, {size}")
        e(f"  s_mov_b32 s{base+3}, 0x20000")
    srd(8, 32, XSIZE)
    srd(12, 34, QSIZE)
    srd(16, 36, SSIZE)
    srd(20, 38, SSIZE)
    srd(24, 40, ASIZE)
    srd(28, 42, OSIZE)
    e("  s_cmp_ge_u32 s3, 4")
    e("  s_cbranch_scc1 L_producer")

    ACC = 128
    def acc(mt, t):
        b = ACC + (mt * 8 + t) * 4
        return f"v[{b}:{b+3}]"
    SETA = [32, 80]
    SETB = [48, 96]
    def fa(s, mt):
        b = SETA[s] + mt * 4
        return f"v[{b}:{b+3}]"
    def fb(s, t):
        b = SETB[s] + t * 4
        return f"v[{b}:{b+3}]"
    e("  v_and_b32 v6, 15, v0")
    e("  v_lshrrev_b32 v7, 4, v0")
    e("  s_lshl_b32 s4, s3, 6")
    e("  v_add_u32 v8, s4, v6")
    e("  v_lshlrev_b32 v8, 7, v8")
    e("  v_lshrrev_b32 v9, 1, v6")
    e("  v_xor_b32 v9, v9, v7")
    e("  v_lshl_add_u32 v2, v9, 4, v8")
    e("  v_xor_b32 v3, 64, v2")
    e("  v_lshlrev_b32 v4, 4, v0")
    e("  v_add_u32 v4, 0x20000, v4")
    e("  v_xor_b32 v5, 64, v4")
    e("  s_add_u32 s4, s4, s48")
    e("  v_lshl_add_u32 v10, v7, 2, s4")
    e(f"  v_mul_u32_u24 v10, {OROW}, v10")
    e("  s_lshl_b32 s5, s49, 1")
    e("  v_lshl_add_u32 v11, v6, 4, s5")
    e("  v_add_u32 v10, v10, v11")
    for r in range(ACC, 256, 2):
        e(f"  v_mov_b64 v[{r}:{r+1}], 0")
    e("  s_mov_b32 s51, 0")
    e("  s_mov_b32 s52, 0x18000")
    e("  s_barrier")

    def reads(s, kk):
        r = []
        va = "v2" if kk == 0 else "v3"
        order = [("a", 0), ("b", 0), ("b", 1), ("b", 2), ("b", 3), ("a", 1), ("b", 4), ("b", 5), ("b", 6), ("b", 7), ("a", 2), ("a", 3)]
        for kind, i in order:
            if kind == "a":
                r.append(f"  ds_read_b128 {fa(s, i)}, {va} offset:{i*2048}")
            else:
                vb = "v4" if i < 4 else "v5"
                r.append(f"  ds_read_b128 {fb(s, i)}, {vb} offset:{kk*8192 + i*1024}")
        return r

    def mfmas(s):
        r = []
        for mt in range(4):
            for t in range(8):
                r.append(f"  v_mfma_f32_16x16x32_bf16 {acc(mt,t)}, {fa(s,mt)}, {fb(s,t)}, {acc(mt,t)}")
        if opt.no_mfma:
            r = []
        return r

    def interleave(main, fill, start=0, every=2):
        out = []
        fi = 0
        for i, m in enumerate(main):
            out.append(m)
            if i >= start and (i - start) % every == 0 and fi < len(fill):
                out.append(fill[fi]); fi += 1
        out += fill[fi:]
        return out

    for x in reads(0, 0):
        e(x)
    e("  s_waitcnt lgkmcnt(0)")
    e(".p2align 6")
    e("L_cloop:")
    adv = [
        "  v_add_u32 v2, 0x8000, v2",
        "  v_and_b32 v2, 0x1ffff, v2",
        "  v_xor_b32 v4, 0x4000, v4",
        "  v_xor_b32 v5, 0x4000, v5",
        "  v_xor_b32 v3, 64, v2",
    ]
    m = mfmas(0)
    body = interleave(m[:24], reads(1, 1)) + interleave(m[24:], adv, every=1)
    for x in body:
        e(x)
    e("  s_waitcnt lgkmcnt(0)")
    e("  s_barrier")
    for x in interleave(mfmas(1), reads(0, 0)):
        e(x)
    e("  s_add_u32 s51, s51, 1")
    e("  s_cmp_lt_u32 s51, 16")
    e("  s_waitcnt lgkmcnt(0)")
    e("  s_cbranch_scc1 L_cloop")
    e("  s_nop 7")
    e("  s_nop 7")
    e("  s_mov_b32 s4, 0")
    n = 0
    for mt in range(4):
        for r in range(4):
            tb = 32 + n * 4
            for pidx in range(4):
                a0 = ACC + (mt * 8 + 2 * pidx) * 4 + r
                a1 = ACC + (mt * 8 + 2 * pidx + 1) * 4 + r
                e(f"  v_cvt_pk_bf16_f32 v{tb+pidx}, v{a0}, v{a1}")
            e(f"  s_mov_b32 s4, {(16*mt + r) * OROW}")
            if not opt.no_store:
                e(f"  buffer_store_dwordx4 v[{tb}:{tb+3}], v10, s[28:31], s4 offen {opt.store_flags}".rstrip())
            n += 1
    e("  s_endpgm")

    e(".p2align 6")
    e("L_producer:")
    QB = [128, 160, 192, 224]
    SZA = [96, 104, 112, 120]
    OUT = 64
    SF, NZS, AF, ZF = 80, 84, 40, 60
    VQ = 8
    VX = 16
    VSZ, VA, VW, VMASK = 24, 25, 26, 27
    e("  s_sub_u32 s3, s3, 4")
    e("  s_lshl_b32 s4, s3, 1")
    e("  v_lshrrev_b32 v2, 5, v0")
    e("  v_and_b32 v3, 31, v0")
    e("  v_add_u32 v4, s4, v2")
    e(f"  v_mul_u32_u24 v5, {8*QROW}, v4")
    e("  v_lshlrev_b32 v6, 4, v3")
    e("  s_lshl_b32 s5, s49, 2")
    e(f"  v_add3_u32 v{VQ}, v5, v6, s5")
    for i in range(1, 8):
        e(f"  v_add_u32 v{VQ+i}, {i*QROW}, v{VQ}")
    e("  s_lshr_b32 s5, s3, 1")
    e(f"  s_mul_i32 s5, s5, {OROW}")
    e("  s_lshl_b32 s6, s49, 1")
    e("  s_add_u32 s5, s5, s6")
    e(f"  v_lshl_add_u32 v{VSZ}, v3, 3, s5")
    e(f"  v_lshlrev_b32 v{VA}, 4, v4")
    e("  v_lshrrev_b32 v5, 3, v0")
    e("  s_lshl_b32 s5, s3, 6")
    e("  s_add_u32 s5, s5, s48")
    e("  v_add_u32 v5, s5, v5")
    e("  v_lshlrev_b32 v5, 11, v5")
    e("  v_lshrrev_b32 v6, 4, v0")
    e("  v_and_b32 v7, 7, v0")
    e("  v_xor_b32 v6, v6, v7")
    e("  v_lshl_add_u32 v5, v6, 4, v5")
    e("  v_xor_b32 v6, 64, v5")
    for i in range(8):
        src = "v5" if i % 2 == 0 else "v6"
        e(f"  v_add_u32 v{VX+i}, {i*8*2048 - (i&3)*1024}, {src}")
    e("  v_and_b32 v5, 3, v4")
    e("  v_lshrrev_b32 v6, 1, v3")
    e("  v_lshl_add_u32 v5, v5, 4, v6")
    e("  v_and_b32 v6, 1, v3")
    e("  v_lshlrev_b32 v7, 2, v6")
    e("  v_xor_b32 v5, v5, v7")
    e("  v_lshlrev_b32 v5, 4, v5")
    e("  v_lshl_add_u32 v5, v6, 12, v5")
    e("  v_lshrrev_b32 v6, 2, v4")
    e("  v_lshl_add_u32 v5, v6, 13, v5")
    e(f"  v_add_u32 v{VW}, 0x20000, v5")
    e(f"  v_mov_b32 v{VMASK}, 0xffff0000")
    e("  s_lshl_b32 s56, s3, 13")

    def set_q_offsets(jexpr_sgpr):
        return [
            f"  s_cmp_lt_u32 {jexpr_sgpr}, 16",
            f"  s_cselect_b32 s14, {QSIZE}, 0",
            f"  s_cselect_b32 s18, {SSIZE}, 0",
            f"  s_cselect_b32 s22, {SSIZE}, 0",
            f"  s_cselect_b32 s26, {ASIZE}, 0",
            f"  s_add_u32 s58, {jexpr_sgpr}, s50",
            "  s_and_b32 s58, s58, 15",
            f"  s_mul_i32 s52, s58, {64*QROW}",
            f"  s_mul_i32 s53, s58, {2*OROW}",
            "  s_lshl_b32 s54, s58, 7",
        ]

    def set_x_offsets(jexpr_sgpr):
        return [
            f"  s_cmp_lt_u32 {jexpr_sgpr}, 16",
            f"  s_cselect_b32 s10, {XSIZE}, 0",
            f"  s_add_u32 s58, {jexpr_sgpr}, s50",
            "  s_and_b32 s58, s58, 15",
            "  s_lshl_b32 s55, s58, 7",
        ]

    def q_loads(b):
        r = []
        q = QB[b]; z = SZA[b]
        r.append(f"  buffer_load_dwordx2 v[{z}:{z+1}], v{VSZ}, s[16:19], s53 offen")
        r.append(f"  buffer_load_dwordx2 v[{z+2}:{z+3}], v{VSZ}, s[20:23], s53 offen")
        r.append(f"  buffer_load_dwordx4 v[{z+4}:{z+7}], v{VA}, s[24:27], s54 offen")
        for i in range(8):
            r.append(f"  buffer_load_dwordx4 v[{q+4*i}:{q+4*i+3}], v{VQ+i}, s[12:15], s52 offen {opt.q_flags}".rstrip())
        return r

    def x_loads(slot):
        r = []
        for i in range(8):
            pre = ""
            if i % 4 == 0:
                pre = f"  s_add_u32 m0, s56, {slot*32768 + (i//4)*4096}\n  s_nop 0\n"
            r.append(pre + f"  buffer_load_dwordx4 v{VX+i}, s[8:11], s55 offen offset:{(i&3)*1024} {opt.x_flags} lds")
        return r

    def dequant(b, wslot):
        r = []
        q = QB[b]; z = SZA[b]
        for e2 in range(2):
            r.append(f"  v_lshlrev_b32 v{SF+2*e2}, 16, v{z+e2}")
            r.append(f"  v_and_b32 v{SF+2*e2+1}, v{VMASK}, v{z+e2}")
            r.append(f"  v_lshlrev_b32 v{ZF+2*e2}, 16, v{z+2+e2}")
            r.append(f"  v_and_b32 v{ZF+2*e2+1}, v{VMASK}, v{z+2+e2}")
        for i2 in range(4):
            r.append(f"  v_lshlrev_b32 v{AF+4*i2}, 16, v{z+4+i2}")
            r.append(f"  v_and_b32 v{AF+4*i2+2}, v{VMASK}, v{z+4+i2}")
        if opt.pk:
            for e2 in range(2):
                r.append(f"  v_pk_mul_f32 v[{NZS+2*e2}:{NZS+2*e2+1}], v[{ZF+2*e2}:{ZF+2*e2+1}], v[{SF+2*e2}:{SF+2*e2+1}] neg_lo:[1,0] neg_hi:[1,0]")
        else:
            for ee in range(4):
                r.append(f"  v_mul_f32_e64 v{NZS+ee}, -v{ZF+ee}, v{SF+ee}")
        for i2 in range(4):
            for i in (2*i2, 2*i2+1):
                for ee in range(4):
                    reg = q + 4*i + ee
                    r.append(f"  v_cvt_f32_i32 v{reg}, v{reg}")
                if opt.pk:
                    for e2 in range(2):
                        reg = q + 4*i + 2*e2
                        r.append(f"  v_pk_fma_f32 v[{reg}:{reg+1}], v[{reg}:{reg+1}], v[{SF+2*e2}:{SF+2*e2+1}], v[{NZS+2*e2}:{NZS+2*e2+1}]")
                    sel = "op_sel:[0,0] op_sel_hi:[1,0]"
                    for e2 in range(2):
                        reg = q + 4*i + 2*e2
                        r.append(f"  v_pk_mul_f32 v[{reg}:{reg+1}], v[{reg}:{reg+1}], v[{AF+2*i}:{AF+2*i+1}] {sel}")
                else:
                    for ee in range(4):
                        reg = q + 4*i + ee
                        r.append(f"  v_fma_f32 v{reg}, v{reg}, v{SF+ee}, v{NZS+ee}")
                    for ee in range(4):
                        reg = q + 4*i + ee
                        r.append(f"  v_mul_f32 v{reg}, v{reg}, v{AF+2*i}")
            for ee in range(4):
                r.append(f"  v_cvt_pk_bf16_f32 v{OUT+4*ee+i2}, v{q+8*i2+ee}, v{q+8*i2+4+ee}")
        if opt.no_deq:
            r = []
        for ee in range(4):
            r.append(f"  ds_write_b128 v{VW}, v[{OUT+4*ee}:{OUT+4*ee+3}] offset:{wslot*16384 + ee*1024}")
        return r

    e("  s_mov_b32 s57, 0")
    for x in set_q_offsets("s57") + q_loads(0):
        e(x)
    for x in set_x_offsets("s57"):
        e(x)
    e("  s_mov_b32 s57, 1")
    for x in set_q_offsets("s57") + q_loads(1) + x_loads(0):
        e(x)
    for x in set_x_offsets("s57"):
        e(x)
    e("  s_mov_b32 s57, 2")
    for x in set_q_offsets("s57") + q_loads(2) + x_loads(1):
        e(x)
    e("  s_waitcnt vmcnt(38)")
    e("  s_mov_b32 s51, 0")
    e(".p2align 6")
    e("L_ploop:")
    for u in range(4):
        e("  s_add_u32 s57, s51, 2")
        for x in set_x_offsets("s57"):
            e(x)
        e("  s_add_u32 s57, s51, 3")
        for x in set_q_offsets("s57"):
            e(x)
        vm = q_loads((u + 3) % 4) + x_loads((u + 2) % 4)
        dq = dequant(u, u & 1)
        for x in interleave(dq, vm, start=0, every=5):
            e(x)
        if u > 0:
            e("  s_cmp_lt_u32 s51, 13")
            e(f"  s_cbranch_scc1 L_pw{u}")
            e(f"  s_waitcnt vmcnt({[0, 27, 8, 0][u]})")
            e(f"L_pw{u}:")
        e("  s_add_u32 s51, s51, 1")
        e("  s_waitcnt vmcnt(38) lgkmcnt(0)")
        e("  s_barrier")
    e("  s_cmp_lt_u32 s51, 16")
    e("  s_cbranch_scc1 L_ploop")
    e("L_end:")
    e("  s_endpgm")
    e('.section .rodata,"a"')
    e(".p2align 6")
    e(f".amdhsa_kernel {NAME}_kernel")
    e("  .amdhsa_next_free_vgpr 256")
    e("  .amdhsa_next_free_sgpr 64")
    e("  .amdhsa_accum_offset 256")
    e("  .amdhsa_group_segment_fixed_size 0")
    e("  .amdhsa_kernarg_size 64")
    e("  .amdhsa_user_sgpr_count 2")
    e("  .amdhsa_user_sgpr_kernarg_segment_ptr 1")
    e("  .amdhsa_system_sgpr_workgroup_id_x 1")
    e("  .amdhsa_float_denorm_mode_32 3")
    e(".end_amdhsa_kernel")
    return "\n".join(x for x in L if x is not None) + "\n"


if __name__ == "__main__":
    opt = Opt()
    out = f"cdna_kernels/{NAME}.s"
    for a in sys.argv[1:]:
        if a.startswith("-o"):
            out = a[2:]
        else:
            k, v = a.split("=", 1)
            cur = getattr(opt, k)
            if isinstance(cur, bool):
                v = v not in ("0", "False", "false")
            elif isinstance(cur, int):
                v = int(v)
            setattr(opt, k, v)
    open(out, "w").write(gen(opt))
    print("wrote", out)
```

```python
def h4():
    out = []
    for tier in range(2):
        for c in range(4):
            s = []
            for q in range(4):
                s += [4*q + (c + i) % 4 for i in range(4)]
            out.append(s)
    return out

def stag(tier_shift=0):
    out = []
    for tier in range(2):
        for c in range(4):
            s = [c]
            for b in range(1, 4):
                hits = [4*(b-1) + o for o in range(4) if o != c]
                pos = min(3, c + (tier_shift if tier else 0))
                blk = hits[:pos] + [4*b + c] + hits[pos:]
                s += blk
            s += [12 + o for o in range(4) if o != c]
            out.append(s)
    return out

def h2():
    raise NotImplementedError

def stag2():
    out = []
    for tier in range(2):
        for c in range(4):
            first = 0 if c < 2 else 1
            mine = [k for k in range(2, 16) if (k - 2) % 4 == c]
            others = [1 - first] + [k for k in range(2, 16) if (k - 2) % 4 != c]
            s = [first]
            nh = [[0, 3, 6, 9], [0, 4, 7, 10], [1, 4, 7], [2, 5, 8]][c]
            oi = 0
            for j, k in enumerate(mine):
                while oi < nh[j]:
                    s.append(others[oi]); oi += 1
                s.append(k)
            s += others[oi:]
            out.append(s)
    return out

def lock():
    return [list(range(16)) for _ in range(8)]

def pack(seq):
    assert sorted(seq) == list(range(16)), seq
    v = 0
    for i, s in enumerate(seq):
        v |= s << (4 * i)
    return v & 0xffffffff, v >> 32

SCHEDS = {"h4": h4, "stag": stag, "stag_t1": lambda: stag(1), "stag2": stag2, "lock": lock}
if __name__ == "__main__":
    for k, f in SCHEDS.items():
        print(k)
        for s in f():
            print("  ", s, [hex(v) for v in pack(s)])
```

```python
import sys, os
sys.path.insert(0, os.path.dirname(os.path.abspath(__file__)))
import sched

NAME = "standalone__weight_only_int_omniquant__prompt"

HEADER = """; Kernarg layout for this problem (64 bytes, ptrs only, base s[0:1]):
"""

XSIZE = 2048 * 1024 * 2
QSIZE = 1024 * 3584 * 4
SSIZE = 32 * 3584 * 2
ASIZE = 1024 * 2
OSIZE = 2048 * 3584 * 2
QROW = 14336
OROW = 7168
NT = 7
BN = 16 * NT
WBASE = 0x20000
ERS = 240


class Opt:
    seq = "stag_t1"
    xoff = 4
    no_mfma = False
    no_store = False
    no_deq = False
    store_flags = ""
    q_flags = ""
    x_flags = ""
    q0_flags = "nt"
    stamps = False
    every = 6


def gen(opt):
    L = []
    e = L.append
    NWG = 256
    e(HEADER.rstrip())
    e(f"; @launch grid=({NWG},1,1) block=(512,1,1) lds=163840")
    e('.amdgcn_target "amdgcn-amd-amdhsa--gfx950"')
    e(".text")
    e(f".globl {NAME}_kernel")
    e(".p2align 8")
    e(f".type {NAME}_kernel,@function")
    e(f"{NAME}_kernel:")
    e(f"  s_cmp_ge_u32 s2, {NWG}")
    e("  s_cbranch_scc1 L_end")
    e("  s_load_dwordx16 s[32:47], s[0:1], 0")
    if opt.stamps:
        e("  s_memrealtime s[60:61]")
        e("  s_memtime s[62:63]")
    e("  v_lshrrev_b32 v1, 6, v0")
    e("  v_and_b32 v0, 63, v0")
    e("  v_readfirstlane_b32 s3, v1")
    e("  s_and_b32 s4, s2, 7")
    e("  s_lshr_b32 s5, s2, 3")
    e("  s_and_b32 s6, s5, 7")
    e("  s_lshr_b32 s7, s5, 3")
    e("  s_lshl_b32 s48, s6, 8")
    e("  s_lshl_b32 s49, s4, 2")
    e("  s_add_u32 s49, s49, s7")
    e(f"  s_mul_i32 s49, s49, {BN}")
    e("  s_cmp_ge_u32 s3, 4")
    e("  s_cbranch_scc1 L_producer")

    def srd(base, ptr, size):
        e(f"  s_mov_b32 s{base}, s{ptr}")
        e(f"  s_and_b32 s{base+1}, s{ptr+1}, 0xffff")
        e(f"  s_mov_b32 s{base+2}, {size}")
        e(f"  s_mov_b32 s{base+3}, 0x20000")

    def interleave(main, fill, start=0, every=2):
        out = []
        fi = 0
        for i, m in enumerate(main):
            out.append(m)
            if i >= start and (i - start) % every == 0 and fi < len(fill):
                out.append(fill[fi]); fi += 1
        out += fill[fi:]
        return out

    ACC = 144
    def acc(mt, t):
        b = ACC + (mt * NT + t) * 4
        return f"v[{b}:{b+3}]"
    SETX = [32, 80]
    SETW = [48, 96]
    def fx(s, mt):
        b = SETX[s] + mt * 4
        return f"v[{b}:{b+3}]"
    def fw(s, t):
        b = SETW[s] + t * 4
        return f"v[{b}:{b+3}]"
    e("  v_and_b32 v6, 15, v0")
    e("  v_lshrrev_b32 v7, 4, v0")
    e("  s_lshl_b32 s4, s3, 6")
    e("  v_add_u32 v8, s4, v6")
    e("  v_lshlrev_b32 v8, 7, v8")
    e("  v_lshrrev_b32 v9, 1, v6")
    e("  v_xor_b32 v9, v9, v7")
    e("  v_lshl_add_u32 v2, v9, 4, v8")
    e("  v_xor_b32 v3, 64, v2")
    e("  v_bfe_u32 v9, v0, 3, 1")
    e("  v_xor_b32 v9, v9, v0")
    e("  v_lshlrev_b32 v4, 4, v9")
    e(f"  v_add_u32 v4, {WBASE:#x}, v4")
    e("  v_xor_b32 v5, 32, v4")
    e(f"  v_mul_u32_u24 v10, {ERS}, v6")
    e("  v_lshl_add_u32 v10, v7, 3, v10")
    e("  s_lshl_b32 s5, s3, 14")
    e("  v_add_u32 v10, s5, v10")
    e("  v_mul_u32_u24 v8, 4682, v0")
    e("  v_lshrrev_b32 v8, 16, v8")
    e("  v_mul_u32_u24 v9, 14, v8")
    e("  v_sub_u32 v9, v0, v9")
    e(f"  v_mul_u32_u24 v11, {ERS}, v8")
    e("  v_lshl_add_u32 v11, v9, 4, v11")
    e("  v_add_u32 v11, s5, v11")
    e("  s_add_u32 s4, s4, s48")
    e("  v_add_u32 v12, s4, v8")
    e(f"  v_mul_u32_u24 v12, {OROW}, v12")
    e("  v_lshl_add_u32 v12, v9, 4, v12")
    e("  s_lshl_b32 s5, s49, 1")
    e("  v_add_u32 v12, s5, v12")
    for r in range(ACC, 256, 2):
        e(f"  v_mov_b64 v[{r}:{r+1}], 0")
    e("  s_waitcnt lgkmcnt(0)")
    srd(28, 42, OSIZE)
    if opt.stamps:
        srd(16, 46, 1 << 20)
    e("  s_mov_b32 s51, 0")
    e("  s_barrier")

    def reads(s, kk):
        r = []
        va = "v2" if kk == 0 else "v3"
        order = [("x", 0)] + [("w", t) for t in range(NT)] + [("x", 1), ("x", 2), ("x", 3)]
        for kind, i in order:
            if kind == "x":
                r.append(f"  ds_read_b128 {fx(s, i)}, {va} offset:{i*2048}")
            else:
                vb = "v4" if i % 2 == 0 else "v5"
                r.append(f"  ds_read_b128 {fw(s, i)}, {vb} offset:{kk*NT*1024 + i*1024}")
        return r

    def mfmas(s):
        r = []
        for mt in range(4):
            for t in range(NT):
                r.append(f"  v_mfma_f32_16x16x32_bf16 {acc(mt,t)}, {fw(s,t)}, {fx(s,mt)}, {acc(mt,t)}")
        if opt.no_mfma:
            r = []
        return r

    for x in reads(0, 0):
        e(x)
    e("  s_waitcnt lgkmcnt(0)")
    e(".p2align 6")
    e("L_cloop:")
    adv = [
        "  v_add_u32 v2, 0x8000, v2",
        "  v_and_b32 v2, 0x1ffff, v2",
        "  v_xor_b32 v4, 0x4000, v4",
        "  v_xor_b32 v5, 0x4000, v5",
        "  v_xor_b32 v3, 64, v2",
    ]
    m = mfmas(0)
    for x in interleave(m[:22], reads(1, 1)) + interleave(m[22:], adv, every=1):
        e(x)
    e("  s_waitcnt lgkmcnt(0)")
    e("  s_barrier")
    for x in interleave(mfmas(1), reads(0, 0)):
        e(x)
    e("  s_add_u32 s51, s51, 1")
    e("  s_cmp_lt_u32 s51, 16")
    e("  s_waitcnt lgkmcnt(0)")
    e("  s_cbranch_scc1 L_cloop")
    if opt.stamps:
        e("  s_memtime s[64:65]")
    e("  s_nop 7")
    T = 32
    for mt in range(4):
        for t in range(NT):
            a = ACC + (mt * NT + t) * 4
            tb = T + (mt * NT + t) * 2
            e(f"  v_cvt_pk_bf16_f32 v{tb}, v{a}, v{a+1}")
            e(f"  v_cvt_pk_bf16_f32 v{tb+1}, v{a+2}, v{a+3}")
            e(f"  ds_write_b64 v10, v[{tb}:{tb+1}] offset:{mt*16*ERS + t*32}")
    e("  s_waitcnt lgkmcnt(0)")
    e("  s_mov_b32 exec_hi, 0x00ffffff")
    R = 64
    for i in range(16):
        e(f"  ds_read_b128 v[{R+4*i}:{R+4*i+3}], v11 offset:{i*4*ERS}")
    for i in range(16):
        e(f"  s_mov_b32 s4, {i*4*OROW}")
        e(f"  s_waitcnt lgkmcnt({min(15, 15 - i)})")
        if not opt.no_store:
            e(f"  buffer_store_dwordx4 v[{R+4*i}:{R+4*i+3}], v12, s[28:31], s4 offen {opt.store_flags}".rstrip())
    if opt.stamps:
        e("  s_waitcnt vmcnt(0)")
        e("  s_memtime s[66:67]")
        e("  s_memrealtime s[68:69]")
        e("  s_waitcnt lgkmcnt(0)")
        e("  s_sub_u32 s64, s64, s62")
        e("  s_sub_u32 s66, s66, s62")
        e("  v_mov_b32 v4, s60")
        e("  v_mov_b32 v5, s68")
        e("  v_mov_b32 v6, s66")
        e("  v_mov_b32 v7, s64")
        e("  s_lshl_b32 s4, s2, 4")
        e("  s_add_u32 s4, s4, s3")
        e("  s_lshl_b32 s4, s4, 4")
        e("  v_mov_b32 v1, s4")
        e("  s_mov_b64 exec, 1")
        e("  buffer_store_dwordx4 v[4:7], v1, s[16:19], 0 offen")
    e("  s_endpgm")

    e(".p2align 6")
    e("L_producer:")
    QB = [128, 160, 192, 224]
    SZA = [96, 104, 112, 120]
    OUT = 64
    SF, NZS, AF, ZF = 80, 84, 88, 60
    VQ = 8
    VX = 16
    VSZ, VA, VMASK = 24, 25, 26
    VW = 28
    seqs = sched.SCHEDS[opt.seq]()
    e("  s_add_u32 s50, s6, s7")
    e("  s_and_b32 s50, s50, 3")
    e("  s_and_b32 s6, s6, 4")
    e("  s_or_b32 s6, s6, s50")
    lo, hi = sched.pack(seqs[0])
    e(f"  s_mov_b32 s58, {lo:#x}")
    e(f"  s_mov_b32 s59, {hi:#x}")
    for ci in range(1, 8):
        lo, hi = sched.pack(seqs[ci])
        e(f"  s_cmp_eq_u32 s6, {ci}")
        e(f"  s_cselect_b32 s58, {lo:#x}, s58")
        e(f"  s_cselect_b32 s59, {hi:#x}, s59")
    e(f"  s_mul_i32 s50, s4, {opt.xoff}")
    e("  s_sub_u32 s3, s3, 4")
    e("  s_lshl_b32 s4, s3, 1")
    e("  v_lshrrev_b32 v2, 5, v0")
    e("  v_and_b32 v3, 31, v0")
    e("  v_subrev_u32 v5, 4, v3")
    e("  v_cmp_lt_u32 vcc, 27, v3")
    e("  v_add_u32 v4, s4, v2")
    e("  s_lshl_b32 s5, s49, 2")
    e("  v_cndmask_b32 v3, v3, v5, vcc")
    e(f"  v_mul_u32_u24 v5, {8*QROW}, v4")
    e("  v_lshlrev_b32 v6, 4, v3")
    e(f"  v_add3_u32 v{VQ}, v5, v6, s5")
    for i in range(1, 8):
        e(f"  v_add_u32 v{VQ+i}, {i*QROW}, v{VQ}")
    e("  s_lshr_b32 s5, s3, 1")
    e(f"  s_mul_i32 s5, s5, {OROW}")
    e("  s_lshl_b32 s6, s49, 1")
    e("  s_add_u32 s5, s5, s6")
    e(f"  v_lshl_add_u32 v{VSZ}, v3, 3, s5")
    e(f"  v_lshlrev_b32 v{VA}, 4, v4")
    e("  s_waitcnt lgkmcnt(0)")
    srd(12, 34, QSIZE)
    srd(16, 36, SSIZE)
    srd(20, 38, SSIZE)
    srd(24, 40, ASIZE)
    srd(8, 32, XSIZE)

    def next_stage(dst):
        return [
            "  s_add_u32 s57, s58, s50",
            "  s_and_b32 s57, s57, 15",
            "  s_lshr_b64 s[58:59], s[58:59], 4",
            f"  s_mul_i32 s52, s57, {64*QROW}",
            f"  s_mul_i32 s53, s57, {2*OROW}",
            f"  s_lshl_b32 s{dst}, s57, 7",
        ]

    KS = [44, 45, 46, 47] if not opt.stamps else [40, 41, 42, 43]

    def q_loads(b, flags):
        r = []
        q = QB[b]; z = SZA[b]
        r.append(f"  buffer_load_dwordx2 v[{z}:{z+1}], v{VSZ}, s[16:19], s53 offen")
        r.append(f"  buffer_load_dwordx2 v[{z+2}:{z+3}], v{VSZ}, s[20:23], s53 offen")
        r.append(f"  buffer_load_dwordx4 v[{z+4}:{z+7}], v{VA}, s[24:27], s{KS[b]} offen")
        for i in range(8):
            r.append(f"  buffer_load_dwordx4 v[{q+4*i}:{q+4*i+3}], v{VQ+i}, s[12:15], s52 offen {flags}".rstrip())
        return r

    def x_loads(b):
        r = []
        for i in range(8):
            pre = ""
            if i % 4 == 0:
                pre = f"  s_add_u32 m0, s56, {b*32768 + (i//4)*4096}\n  s_nop 0\n"
            r.append(pre + f"  buffer_load_dwordx4 v{VX+i}, s[8:11], s{KS[b]} offen offset:{(i&3)*1024} {opt.x_flags} lds")
        return r

    for x in next_stage(KS[0]) + q_loads(0, opt.q0_flags):
        e(x)
    for x in next_stage(KS[1]) + q_loads(1, opt.q_flags):
        e(x)
    e("  v_lshrrev_b32 v5, 3, v0")
    e("  s_lshl_b32 s5, s3, 6")
    e("  s_add_u32 s5, s5, s48")
    e("  v_add_u32 v5, s5, v5")
    e("  v_lshlrev_b32 v5, 11, v5")
    e("  v_lshrrev_b32 v6, 4, v0")
    e("  v_and_b32 v7, 7, v0")
    e("  v_xor_b32 v6, v6, v7")
    e("  v_lshl_add_u32 v5, v6, 4, v5")
    e("  v_xor_b32 v6, 64, v5")
    for i in range(8):
        src = "v5" if i % 2 == 0 else "v6"
        e(f"  v_add_u32 v{VX+i}, {i*8*2048 - (i&3)*1024}, {src}")
    e("  v_lshrrev_b32 v5, 2, v4")
    e(f"  v_mul_u32_u24 v5, {NT*1024}, v5")
    e("  v_lshrrev_b32 v6, 2, v3")
    e("  v_lshl_add_u32 v5, v6, 10, v5")
    e("  v_and_b32 v6, 3, v4")
    e("  v_lshl_add_u32 v5, v6, 8, v5")
    e("  v_and_b32 v6, 3, v3")
    e("  v_lshl_add_u32 v5, v6, 6, v5")
    e("  v_bfe_u32 v6, v3, 1, 2")
    e("  v_lshl_add_u32 v5, v6, 4, v5")
    e(f"  v_add_u32 v{VW}, {WBASE:#x}, v5")
    for ee in range(1, 4):
        e(f"  v_xor_b32 v{VW+ee}, {ee*16}, v{VW}")
    e(f"  v_mov_b32 v{VMASK}, 0xffff0000")
    e("  s_lshl_b32 s56, s3, 13")

    def dequant(b, wslot):
        r = []
        q = QB[b]; z = SZA[b]
        for e2 in range(2):
            r.append(f"  v_lshlrev_b32 v{SF+2*e2}, 16, v{z+e2}")
            r.append(f"  v_and_b32 v{SF+2*e2+1}, v{VMASK}, v{z+e2}")
            r.append(f"  v_lshlrev_b32 v{ZF+2*e2}, 16, v{z+2+e2}")
            r.append(f"  v_and_b32 v{ZF+2*e2+1}, v{VMASK}, v{z+2+e2}")
        for i2 in range(4):
            r.append(f"  v_lshlrev_b32 v{AF+2*i2}, 16, v{z+4+i2}")
            r.append(f"  v_and_b32 v{AF+2*i2+1}, v{VMASK}, v{z+4+i2}")
        for ee in range(4):
            r.append(f"  v_mul_f32_e64 v{NZS+ee}, -v{ZF+ee}, v{SF+ee}")
        for i2 in range(4):
            for i in (2*i2, 2*i2+1):
                for ee in range(4):
                    reg = q + 4*i + ee
                    r.append(f"  v_cvt_f32_i32 v{reg}, v{reg}")
                for ee in range(4):
                    reg = q + 4*i + ee
                    r.append(f"  v_fma_f32 v{reg}, v{reg}, v{SF+ee}, v{NZS+ee}")
                for ee in range(4):
                    reg = q + 4*i + ee
                    r.append(f"  v_mul_f32 v{reg}, v{reg}, v{AF+i}")
            for ee in range(4):
                r.append(f"  v_cvt_pk_bf16_f32 v{OUT+4*ee+i2}, v{q+8*i2+ee}, v{q+8*i2+4+ee}")
        if opt.no_deq:
            r = []
        for ee in range(4):
            r.append(f"  ds_write_b128 v{VW+ee}, v[{OUT+4*ee}:{OUT+4*ee+3}] offset:{wslot*16384}")
        return r

    e("  s_mov_b32 s51, 0")
    e("  s_waitcnt vmcnt(11)")
    e(".p2align 6")
    e("L_ploop:")
    for u in range(4):
        bq = (u + 2) % 4
        for x in next_stage(KS[bq]):
            e(x)
        if u >= 2:
            e("  s_cmp_lt_u32 s51, 14")
            e(f"  s_cselect_b32 s14, {QSIZE}, 0")
            e(f"  s_cselect_b32 s18, {SSIZE}, 0")
            e(f"  s_cselect_b32 s22, {SSIZE}, 0")
            e(f"  s_cselect_b32 s26, {ASIZE}, 0")
        vm = x_loads(u) + q_loads(bq, opt.q_flags)
        dq = dequant(u, u & 1)
        for x in interleave(dq, vm, start=0, every=opt.every):
            e(x)
        if u >= 2:
            e("  s_cmp_lt_u32 s51, 14")
            e(f"  s_cbranch_scc1 L_pw{u}")
            e("  s_waitcnt vmcnt(0)")
            e(f"L_pw{u}:")
        e("  s_add_u32 s51, s51, 1")
        e("  s_waitcnt vmcnt(11) lgkmcnt(0)")
        e("  s_barrier")
        if opt.stamps:
            e("  s_memtime s[64:65]")
            e("  s_waitcnt lgkmcnt(0)")
            e("  s_sub_u32 s64, s64, s62")
            e("  s_sub_u32 s65, s51, 1")
            e("  s_nop 0")
            e("  s_mov_b32 m0, s65")
            e("  s_nop 1")
            e("  v_writelane_b32 v32, s64, m0")
    e("  s_cmp_lt_u32 s51, 16")
    e("  s_cbranch_scc1 L_ploop")
    if opt.stamps:
        srd(28, 46, 1 << 20)
        e("  s_lshl_b32 s4, s2, 2")
        e("  s_add_u32 s4, s4, s3")
        e("  s_lshl_b32 s4, s4, 6")
        e("  s_add_u32 s4, s4, 0x20000")
        e("  v_lshl_add_u32 v1, v0, 2, s4")
        e("  s_mov_b64 exec, 0xffff")
        e("  buffer_store_dword v32, v1, s[28:31], 0 offen")
    e("L_end:")
    e("  s_endpgm")
    e('.section .rodata,"a"')
    e(".p2align 6")
    e(f".amdhsa_kernel {NAME}_kernel")
    e("  .amdhsa_next_free_vgpr 256")
    e("  .amdhsa_next_free_sgpr 72")
    e("  .amdhsa_accum_offset 256")
    e("  .amdhsa_group_segment_fixed_size 0")
    e("  .amdhsa_kernarg_size 64")
    e("  .amdhsa_user_sgpr_count 2")
    e("  .amdhsa_user_sgpr_kernarg_segment_ptr 1")
    e("  .amdhsa_system_sgpr_workgroup_id_x 1")
    e("  .amdhsa_float_denorm_mode_32 3")
    e(".end_amdhsa_kernel")
    return "\n".join(x for x in L if x is not None) + "\n"


if __name__ == "__main__":
    opt = Opt()
    out = f"cdna_kernels/{NAME}.s"
    for a in sys.argv[1:]:
        if a.startswith("-o"):
            out = a[2:]
        else:
            k, v = a.split("=", 1)
            cur = getattr(opt, k)
            if isinstance(cur, bool):
                v = v not in ("0", "False", "false")
            elif isinstance(cur, int):
                v = int(v)
            else:
                v = v.replace("+", " ")
            setattr(opt, k, v)
    open(out, "w").write(gen(opt))
    print("wrote", out)
```
